```python
import torch

def _softmax(x, axis=-1):
    return torch.softmax(x, dim=axis)
def _gelu(x):
    return torch.nn.functional.gelu(x, approximate="tanh")
def _silu(x):
    return torch.nn.functional.silu(x)
def _sigmoid(x):
    return torch.sigmoid(x)
def _layernorm(x, axis=-1, eps=1e-5):
    m = x.mean(dim=axis, keepdim=True)
    v = x.var(dim=axis, keepdim=True, unbiased=False)
    return (x - m) / torch.sqrt(v + eps)
def _scatter_add(tgt, idx, src, axis=0):
    return tgt.clone().index_add_(axis, idx, src)
def _segment_sum(src, seg, n):
    out = torch.zeros((n,) + src.shape[1:], dtype=src.dtype)
    return out.index_add_(0, seg, src)
def _pad(x, pw):
    flat = tuple(v for pair in reversed(pw) for v in pair)
    return torch.nn.functional.pad(x, flat)

kernel_name = 'parallel_sum__linear_attn_block__dense_activation_relu__prompt'

def setup_inputs():

    _w = (lambda a: (lambda t: t.to(torch.bfloat16) if t.is_floating_point() else t)(torch.as_tensor(a)))
    def _A_setup():
        B, S, D = 1, 2048, 512
        return {
            "x": _w((lambda *s: torch.randn(*s, dtype=torch.bfloat16) * 0.05)(B, S, D)),
            "wqkv": _w((lambda *s: torch.randn(*s, dtype=torch.bfloat16) * 0.2)(D, 3 * D)),
            "wo": _w((lambda *s: torch.randn(*s, dtype=torch.bfloat16) * 0.2)(D, D)),
        }
    _A_in = _A_setup()

    def _B_setup():
        B, S, D, Dff = 1, 2048, 512, 1376
        return {
            "x": _w((lambda *s: torch.randn(*s, dtype=torch.bfloat16) * 0.05)(B, S, D)),
            "w1": _w((lambda *s: torch.randn(*s, dtype=torch.bfloat16) * 0.05)(D, Dff)),
            "w2": _w((lambda *s: torch.randn(*s, dtype=torch.bfloat16) * 0.05)(Dff, D)),
        }
    _B_in = _B_setup()

    return {
        "A_x": _A_in["x"],
        "A_wqkv": _A_in["wqkv"],
        "A_wo": _A_in["wo"],
        "B_x": _B_in["x"],
        "B_w1": _B_in["w1"],
        "B_w2": _B_in["w2"],
    }

def reference(A_x, A_wqkv, A_wo, B_x, B_w1, B_w2):
    def _A_ref(x, wqkv, wo):
        B, S, D = x.shape
        H = 32; Dh = D // H
        qkv = (lambda x, *d: x.permute(*d))((x @ wqkv).reshape(B, S, 3, H, Dh), 2, 0, 3, 1, 4)
        q, k, v = qkv[0], qkv[1], qkv[2]
        phi = lambda t: torch.where(t > 0, t + 1, torch.exp(t)) + 1e-6
        pq, pk = phi(q), phi(k)
        kv = torch.einsum("bhsd,bhse->bhde", pk, v)
        z = torch.einsum("bhsd->bhd", pk)
        num = torch.einsum("bhqd,bhde->bhqe", pq, kv)
        den = torch.einsum("bhqd,bhd->bhq", pq, z)[..., None] + 1e-6
        o = num / den
        return (lambda x, *d: x.permute(*d))(o, 0, 2, 1, 3).reshape(B, S, D) @ wo

    def _B_ref(x, w1, w2):
        h = torch.einsum("bsd,df->bsf", x, w1)
        zero = torch.zeros_like(h)
        h = torch.maximum(h, zero)
        return torch.einsum("bsf,fd->bsd", h, w2)

    x = A_x
    xn = _layernorm(x, axis=-1)
    return x + _A_ref(xn, A_wqkv, A_wo) + _B_ref(xn, B_w1, B_w2)
```

```python
class Asm:
    def __init__(self):
        self.lines = []
        self.uid = 0
    def __call__(self, s):
        for l in s.strip("\n").split("\n"):
            self.lines.append("  " + l.strip() if l.strip() and not l.strip().endswith(":") else l.strip())
    def label(self, name):
        self.lines.append(name + ":")
    def newlabel(self, base):
        self.uid += 1
        return f"L_{base}_{self.uid}"
    def comment(self, s):
        self.lines.append("  ; " + s)
    def text(self):
        return "\n".join(self.lines) + "\n"

def v(i, n=1):
    return f"v{i}" if n == 1 else f"v[{i}:{i+n-1}]"
def a(i, n=1):
    return f"a{i}" if n == 1 else f"a[{i}:{i+n-1}]"
def s(i, n=1):
    return f"s{i}" if n == 1 else f"s[{i}:{i+n-1}]"

def kd(name, vgpr, sgpr, acc):
    return f""".section .rodata,"a"
.p2align 6
.amdhsa_kernel {name}
  .amdhsa_next_free_vgpr {vgpr}
  .amdhsa_next_free_sgpr {sgpr}
  .amdhsa_accum_offset {acc}
  .amdhsa_group_segment_fixed_size 0
  .amdhsa_kernarg_size 72
  .amdhsa_user_sgpr_count 2
  .amdhsa_user_sgpr_kernarg_segment_ptr 1
  .amdhsa_system_sgpr_workgroup_id_x 1
.end_amdhsa_kernel
.text
"""
def head(name):
    return f""".globl {name}
.p2align 8
.type {name},@function
{name}:
"""
def interleave(main, *streams):
    n = len(main)
    slots = [[] for _ in range(n)]
    for st in streams:
        items, f0, f1 = st
        m = len(items)
        if m == 0: continue
        lo = int(f0 * n); hi = max(lo + 1, int(f1 * n))
        span = hi - lo
        for k, it in enumerate(items):
            pos = lo + (k * span) // m
            slots[min(pos, n - 1)].append(it)
    out = []
    for i in range(n):
        out.append(main[i])
        out += slots[i]
    return out
```

```python
import sys
from asmlib import *

NKB = 59
ACT_BYTES = 128 * NKB * 1024
WS_KV = 0x800000
WS_Z = 0x808000
WS_USED = 0x810000
LOG2E = 0x3fb8aa3b

def load_ptrs(A):
    A("""
s_load_dwordx16 s[4:19], s[0:1], 0
s_load_dwordx2 s[20:21], s[0:1], 64
""")

def srd(A, d, base, nbytes):
    A(f"s_mov_b32 s{d}, s{base}")
    A(f"s_mov_b32 s{d+1}, s{base+1}")
    A(f"s_mov_b32 s{d+2}, {nbytes}")
    A(f"s_mov_b32 s{d+3}, 0x20000")

def k_zero():
    A = Asm()
    A("""
s_cmp_ge_u32 s2, 9
s_cbranch_scc1 Lz_end
s_load_dwordx2 s[20:21], s[0:1], 64
v_mov_b32 v4, 0
v_mov_b32 v5, 0
v_mov_b32 v6, 0
v_mov_b32 v7, 0
v_lshlrev_b32 v1, 4, v0
s_lshl_b32 s3, s2, 12
""")
    A(f"s_add_u32 s3, s3, {WS_KV}")
    A("s_waitcnt lgkmcnt(0)")
    srd(A, 36, 20, WS_USED)
    A("buffer_store_dwordx4 v[4:7], v1, s[36:39], s3 offen")
    A("s_waitcnt vmcnt(0)")
    A.label("Lz_end")
    A("s_endpgm")
    return A.text()

XR = 0
WR = 49152
AUX = 122880
ST_M = AUX
ST_R = AUX + 512
COLS = AUX + 1024
DUMMY = AUX + 2560
KVX = AUX + 4096
V_LANE = 1; V_OX = 2; V_OW = 3; V_AXL = 4; V_AXH = 5; V_AW = 6
V_T = 10
V_ONES = 16
SET = [20, 60]
def XF(st, i): return SET[st] + 4 * i
def WF(st, T): return SET[st] + 16 + 4 * T
def ACC(T, i): return 100 + (T * 4 + i) * 4
V_RS = 196; V_GR = 204; V_CS = 212; V_T2 = 236

S_RB = 22; S_CG = 23; S_W = 24; S_WR = 25; S_WC = 26
S_X = 28; S_WS_ = 32; S_ACT = 36
S_STR = 44; S_XO = 45; S_WO = 46; S_WC0 = 47
S_M0 = 53; S_T = 55
S_STR64 = 64

def p1_dma(stage):
    slot = stage % 3
    out = []
    for i in range(4):
        out.append(f"s_add_u32 m0, s{S_M0}, {XR + slot*16384 + i*4096}\n"
                   f"s_add_u32 s{S_T}, s{S_XO}, {stage*128 + i*32768}\n"
                   f"buffer_load_dwordx4 v{V_OX}, s[{S_X}:{S_X+3}], s{S_T} offen lds")
    for h in range(2):
        for j in range(3):
            out.append(f"s_add_u32 m0, s{S_M0}, {WR + slot*24576 + j*8192 + h*4096}\n"
                       f"s_add_u32 s{S_T}, s{S_WO}, s{S_WC0 + h*3 + j}\n"
                       f"buffer_load_dwordx4 v{V_OW}, s[{S_WS_}:{S_WS_+3}], s{S_T} offen lds")
    out.append(f"s_add_u32 s{S_WO}, s{S_WO}, s{S_STR64}")
    return out

def p1_reads(stage, ks, st):
    slot = stage % 3
    out = []
    xr = []
    for i in range(4):
        areg = V_AXL if i < 2 else V_AXH
        xr.append(f"ds_read_b128 {v(XF(st,i),4)}, v{areg} offset:{XR + slot*16384 + (i&1)*2048 + ks*512}")
    wr = []
    for j in range(3):
        for tt in range(2):
            for hh in range(2):
                if slot < 2:
                    areg = V_AW + tt; off = slot*24576
                else:
                    areg = V_AW + 2 + tt; off = 0
                off += j*8192 + ks*4096 + hh*256
                wr.append(f"ds_read_b64_tr_b16 {v(WF(st,2*j+tt)+2*hh,2)}, v{areg} offset:{off}")
    out = [xr[0], wr[0], wr[1], xr[1], wr[2], wr[3], xr[2], xr[3]] + wr[4:]
    return out

def p1_mfmas(qkv, st, first):
    out = []
    for T in range(6):
        for i in range(4):
            c = "0" if first else v(ACC(T,i),4)
            if qkv and T >= 2:
                out.append(f"v_mfma_f32_16x16x32_bf16 {v(ACC(T,i),4)}, {v(XF(st,i),4)}, {v(WF(st,T),4)}, {c}")
            else:
                out.append(f"v_mfma_f32_16x16x32_bf16 {v(ACC(T,i),4)}, {v(WF(st,T),4)}, {v(XF(st,i),4)}, {c}")
    for i in range(2):
        c = "0" if first else v(V_RS+4*i,4)
        out.append(f"v_mfma_f32_16x16x32_bf16 {v(V_RS+4*i,4)}, {v(V_ONES,4)}, {v(XF(st,i),4)}, {c}")
        c = "0" if first else v(V_GR+4*i,4)
        out.append(f"v_mfma_f32_16x16x32_bf16 {v(V_GR+4*i,4)}, {v(XF(st,i),4)}, {v(XF(st,i),4)}, {c}")
    return out

def p1_colsum(A, st, ks, stage):
    lab = A.newlabel("cs")
    A(f"s_cmp_lg_u32 s{S_WR}, {ks}")
    A(f"s_cbranch_scc1 {lab}")
    for T in range(6):
        c = "0" if stage == 0 else v(V_CS+4*T,4)
        A(f"v_mfma_f32_16x16x32_bf16 {v(V_CS+4*T,4)}, {v(V_ONES,4)}, {v(WF(st,T),4)}, {c}")
    A.label(lab)

def p1_mainloop(A, qkv):
    for s_ in range(8):
        m = p1_mfmas(qkv, 0, s_ == 0)
        r = p1_reads(s_, 1, 1)
        for l in interleave(m, (r, 0.0, 0.7)): A(l)
        p1_colsum(A, 0, 0, s_)
        if s_ < 7:
            n = 10 if s_ <= 5 else 0
            A(f"s_waitcnt vmcnt({n}) lgkmcnt(0)")
            A("s_barrier")
        else:
            A("s_waitcnt lgkmcnt(0)")
        m = p1_mfmas(qkv, 1, False)
        r = p1_reads(s_ + 1, 0, 0) if s_ < 7 else []
        d = p1_dma(s_ + 3) if s_ + 3 <= 7 else []
        for l in interleave(m, (r, 0.0, 0.6), (d, 0.1, 1.0)): A(l)
        p1_colsum(A, 1, 1, s_)
        if s_ < 7:
            A("s_waitcnt lgkmcnt(0)")

def bf16r2(A, a_, b_, t):
    A(f"v_cvt_pk_bf16_f32 v{t}, v{a_}, v{b_}")
    A(f"v_lshlrev_b32 v{a_}, 16, v{t}")
    A(f"v_and_b32 v{b_}, 0xffff0000, v{t}")

def p1_stats(A):
    A("s_nop 7")
    A("s_nop 1")
    t = V_T2
    A(f"v_and_b32 v{t}, 3, v{V_LANE}")
    A(f"v_cmp_eq_u32 s[{S_T+1}:{S_T+2}], 1, v{t}")
    A(f"v_cmp_eq_u32 s[{S_T+3}:{S_T+4}], 2, v{t}")
    A(f"v_cmp_eq_u32 s[{S_T+5}:{S_T+6}], 3, v{t}")
    A("s_nop 1")
    for i in range(2):
        g = V_GR + 4*i
        A(f"v_cndmask_b32 v{g}, v{g}, v{g+1}, s[{S_T+1}:{S_T+2}]")
        A(f"v_cndmask_b32 v{g}, v{g}, v{g+2}, s[{S_T+3}:{S_T+4}]")
        A(f"v_cndmask_b32 v{g}, v{g}, v{g+3}, s[{S_T+5}:{S_T+6}]")
    m0, m1 = V_RS, V_RS+4
    g0, g1 = V_GR, V_GR+4
    inv = 0x3b000000
    A(f"v_mul_f32 v{m0}, {inv:#x}, v{m0}")
    A(f"v_mul_f32 v{m1}, {inv:#x}, v{m1}")
    A(f"v_mul_f32 v{g0}, {inv:#x}, v{g0}")
    A(f"v_mul_f32 v{g1}, {inv:#x}, v{g1}")
    A(f"v_fma_f32 v{g0}, -v{m0}, v{m0}, v{g0}")
    A(f"v_fma_f32 v{g1}, -v{m1}, v{m1}, v{g1}")
    A(f"v_max_f32 v{g0}, 0, v{g0}")
    A(f"v_max_f32 v{g1}, 0, v{g1}")
    bf16r2(A, m0, m1, t)
    bf16r2(A, g0, g1, t)
    eps = 0x3727c5ac
    A(f"v_add_f32 v{g0}, {eps:#x}, v{g0}")
    A(f"v_add_f32 v{g1}, {eps:#x}, v{g1}")
    bf16r2(A, g0, g1, t)
    A(f"v_sqrt_f32 v{g0}, v{g0}")
    A(f"v_sqrt_f32 v{g1}, v{g1}")
    A("s_nop 0")
    bf16r2(A, g0, g1, t)
    A(f"v_rcp_f32 v{g0}, v{g0}")
    A(f"v_rcp_f32 v{g1}, v{g1}")
    A(f"v_sub_f32 v{m0}, 0, v{m0}")
    A(f"v_sub_f32 v{m1}, 0, v{m1}")
    A(f"v_and_b32 v{t}, 15, v{V_LANE}")
    A(f"v_lshrrev_b32 v{t+1}, 2, v{t}")
    A(f"v_lshrrev_b32 v{t+2}, 4, v{V_LANE}")
    A(f"v_cmp_eq_u32 vcc, v{t+1}, v{t+2}")
    A(f"s_lshl_b32 s{S_T}, s{S_WR}, 8")
    A(f"s_lshl_b32 s{S_T+1}, s{S_WC}, 7")
    A(f"s_add_u32 s{S_T}, s{S_T}, s{S_T+1}")
    A(f"s_add_u32 s{S_T}, s{S_T}, {ST_M}")
    A(f"v_lshlrev_b32 v{t+1}, 2, v{t}")
    A(f"v_add_u32 v{t+2}, s{S_T}, v{t+1}")
    A(f"v_mov_b32 v{t+3}, {DUMMY}")
    A(f"v_cndmask_b32 v{t+2}, v{t+3}, v{t+2}, vcc")
    A(f"ds_write_b32 v{t+2}, v{m0}")
    A(f"ds_write_b32 v{t+2}, v{m1} offset:64")
    A(f"ds_write_b32 v{t+2}, v{g0} offset:512")
    A(f"ds_write_b32 v{t+2}, v{g1} offset:576")
    A(f"s_mul_i32 s{S_T}, s{S_W}, 384")
    A(f"s_add_u32 s{S_T}, s{S_T}, {COLS}")
    A(f"v_add_u32 v{t+2}, s{S_T}, v{t+1}")
    for T in range(6):
        A(f"ds_write_b32 v{t+2}, v{V_CS+4*T} offset:{T*64}")
    A("s_waitcnt lgkmcnt(0)")
    A("s_barrier")

def bc(reg):
    base = reg & ~1
    sel = reg & 1
    return v(base, 2), sel

def pk_fma_bc1(A, d, s0, s1reg, s2):
    p, sel = bc(s1reg)
    A(f"v_pk_fma_f32 {v(d,2)}, {v(s0,2)}, {p}, {v(s2,2)} op_sel:[0,{sel},0] op_sel_hi:[1,{sel},1]")
def pk_mul_bc1(A, d, s0, s1reg):
    p, sel = bc(s1reg)
    A(f"v_pk_mul_f32 {v(d,2)}, {v(s0,2)}, {p} op_sel:[0,{sel}] op_sel_hi:[1,{sel}]")

def ct_stat_addrs(A, t):
    A(f"v_and_b32 v{t+2}, 15, v{V_LANE}")
    A(f"v_lshlrev_b32 v{t+2}, 2, v{t+2}")
    A(f"s_lshl_b32 s{S_T}, s{S_WR}, 8")
    A(f"s_add_u32 s{S_T}, s{S_T}, {ST_M}")
    A(f"s_lshl_b32 s{S_T+1}, s{S_WC}, 7")
    A(f"s_add_u32 s{S_T+2}, s{S_T}, s{S_T+1}")
    A(f"s_sub_u32 s{S_T+3}, s{S_T}, s{S_T+1}")
    A(f"v_add_u32 v{t}, s{S_T+2}, v{t+2}")
    A(f"v_add_u32 v{t+1}, s{S_T+3}, v{t+2}")

def store_bases(A, kb_sreg):
    A(f"s_lshl_b32 s{S_T}, s{S_RB}, 3")
    A(f"s_lshl_b32 s{S_T+1}, s{S_WR}, 2")
    A(f"s_add_u32 s{S_T}, s{S_T}, s{S_T+1}")
    A(f"s_lshl_b32 s{S_T+1}, s{S_WC}, 1")
    for i in range(4):
        A(f"s_xor_b32 s{S_T+2}, s{S_T+1}, {i}")
        A(f"s_add_u32 s{S_T+2}, s{S_T+2}, s{S_T}")
        A(f"s_mul_i32 s{S_T+2}, s{S_T+2}, {NKB}")
        A(f"s_add_u32 s{S_T+2}, s{S_T+2}, s{kb_sreg}")
        A(f"s_lshl_b32 s{S_T+4+i}, s{S_T+2}, 10")

def p1_epi_ffn(A, sc=""):
    t = V_T2
    C0, C1, NM, RI = 20, 44, 68, 72
    ct_stat_addrs(A, t)
    for i in range(4):
        A(f"ds_read_b32 v{NM+i}, v{t + (i>>1)} offset:{64*i}")
        A(f"ds_read_b32 v{RI+i}, v{t + (i>>1)} offset:{512+64*i}")
    A(f"v_lshrrev_b32 v{t+2}, 4, v{V_LANE}")
    A(f"v_lshlrev_b32 v{t+2}, 4, v{t+2}")
    A(f"s_mul_i32 s{S_T}, s{S_WC}, 384")
    A(f"s_add_u32 s{S_T}, s{S_T}, {COLS}")
    A(f"v_add_u32 v{t+2}, s{S_T}, v{t+2}")
    for T in range(6):
        A(f"ds_read_b128 {v(C0+4*T,4)}, v{t+2} offset:{T*64}")
        A(f"ds_read_b128 {v(C1+4*T,4)}, v{t+2} offset:{768+T*64}")
    A(f"s_sub_u32 s{S_T+8}, s{S_CG}, 8")
    A(f"s_mul_i32 s{S_T+8}, s{S_T+8}, 6")
    A(f"s_add_u32 s{S_T+8}, s{S_T+8}, s{S_WC}")
    store_bases(A, S_T+8)
    A(f"v_lshlrev_b32 v{t+3}, 4, v{V_LANE}")
    A(f"v_add_u32 v{t+4}, 4096, v{t+3}")
    A("s_waitcnt lgkmcnt(0)")
    for k in range(12):
        A(f"v_pk_add_f32 {v(C0+2*k,2)}, {v(C0+2*k,2)}, {v(C1+2*k,2)}")
    done = A.newlabel("ffn_done")
    OUT = [76, 80, 84, 88]
    n = 0
    for j in range(3):
        A(f"s_cmp_ge_u32 s{S_T+8}, {43 - 2*j}")
        A(f"s_cbranch_scc1 {done}")
        for i in range(4):
            o = OUT[n % 4]; n += 1
            for tt in range(2):
                ac = ACC(2*j+tt, i); c = C0 + 4*(2*j+tt)
                for h in range(2):
                    pk_fma_bc1(A, ac+2*h, c+2*h, NM+i, ac+2*h)
                for h in range(2):
                    pk_mul_bc1(A, ac+2*h, ac+2*h, RI+i)
                for h in range(2):
                    A(f"v_cvt_pk_bf16_f32 v{o+2*tt+h}, v{ac+2*h}, v{ac+2*h+1}")
            for k in range(4):
                A(f"v_pk_max_i16 v{o+k}, v{o+k}, 0")
            vo = t+3 if j < 2 else t+4
            imm = 2048*j if j < 2 else 0
            A(f"buffer_store_dwordx4 {v(o,4)}, v{vo}, s[{S_ACT}:{S_ACT+3}], s{S_T+4+i} offen offset:{imm}{sc}")
    A.label(done)

def phi_pair(A, ac, rinv_op, rl_op, K1, KE, tmp):
    ro, rs, rh = rinv_op
    lo, ls, lh = rl_op
    A(f"v_pk_mul_f32 {v(tmp,2)}, {v(ac,2)}, {lo} op_sel:[0,{ls}] op_sel_hi:[1,{lh}]")
    A(f"v_pk_fma_f32 {v(ac,2)}, {v(ac,2)}, {ro}, {v(K1,2)} op_sel:[0,{rs},0] op_sel_hi:[1,{rh},1]")
    A(f"v_exp_f32_e64 v{tmp}, v{tmp} clamp")
    A(f"v_exp_f32_e64 v{tmp+1}, v{tmp+1} clamp")
    A("s_nop 0")
    A(f"v_max_f32 v{ac}, v{ac}, v{tmp}")
    A(f"v_max_f32 v{ac+1}, v{ac+1}, v{tmp+1}")
    A(f"v_pk_add_f32 {v(ac,2)}, {v(ac,2)}, {v(KE,2)}")

def p1_epi_qkv(A, sc=""):
    t = V_T2
    NM4, RI4, RL4 = 20, 36, 52
    CK = 68
    CQ0, CQ1 = 76, 84
    NM, RI, RL = 92, 96, 196
    K1, KE = 200, 202
    TMP = 204
    PK, VV = 212, 220
    KVA = 228
    ZA = 244
    A(f"v_lshrrev_b32 v{t+2}, 4, v{V_LANE}")
    A(f"v_lshlrev_b32 v{t+2}, 4, v{t+2}")
    A(f"s_lshl_b32 s{S_T}, s{S_WR}, 8")
    A(f"s_add_u32 s{S_T}, s{S_T}, {ST_M}")
    A(f"s_lshl_b32 s{S_T+1}, s{S_WC}, 7")
    A(f"s_add_u32 s{S_T+2}, s{S_T}, s{S_T+1}")
    A(f"s_sub_u32 s{S_T+3}, s{S_T}, s{S_T+1}")
    A(f"v_add_u32 v{t}, s{S_T+2}, v{t+2}")
    A(f"v_add_u32 v{t+1}, s{S_T+3}, v{t+2}")
    for i in range(4):
        A(f"ds_read_b128 {v(NM4+4*i,4)}, v{t+(i>>1)} offset:{64*i}")
        A(f"ds_read_b128 {v(RI4+4*i,4)}, v{t+(i>>1)} offset:{512+64*i}")
    A(f"s_mul_i32 s{S_T}, s{S_WC}, 384")
    A(f"s_add_u32 s{S_T}, s{S_T}, {COLS}")
    A(f"v_add_u32 v{t+2}, s{S_T}, v{t+2}")
    for T in range(2):
        A(f"ds_read_b128 {v(CQ0+4*T,4)}, v{t+2} offset:{T*64}")
        A(f"ds_read_b128 {v(CQ1+4*T,4)}, v{t+2} offset:{768+T*64}")
    A(f"v_and_b32 v{t+3}, 15, v{V_LANE}")
    A(f"v_lshlrev_b32 v{t+3}, 2, v{t+3}")
    A(f"v_add_u32 v{t+3}, s{S_T}, v{t+3}")
    for T in range(2, 6):
        A(f"ds_read_b32 v{CK+T-2}, v{t+3} offset:{T*64}")
        A(f"ds_read_b32 v{CK+4+T-2}, v{t+3} offset:{768+T*64}")
    ct_stat_addrs(A, t)
    for i in range(4):
        A(f"ds_read_b32 v{NM+i}, v{t + (i>>1)} offset:{64*i}")
        A(f"ds_read_b32 v{RI+i}, v{t + (i>>1)} offset:{512+64*i}")
    A(f"v_mov_b32 v{K1}, 1.0")
    A(f"v_mov_b32 v{K1+1}, 1.0")
    A(f"v_mov_b32 v{KE}, 0x358637bd")
    A(f"v_mov_b32 v{KE+1}, 0x358637bd")
    A("s_waitcnt lgkmcnt(0)")
    A(f"v_pk_add_f32 {v(CK,2)}, {v(CK,2)}, {v(CK+4,2)}")
    A(f"v_pk_add_f32 {v(CK+2,2)}, {v(CK+2,2)}, {v(CK+6,2)}")
    for k in range(4):
        A(f"v_pk_add_f32 {v(CQ0+2*k,2)}, {v(CQ0+2*k,2)}, {v(CQ1+2*k,2)}")
    for k in range(16):
        A(f"v_mul_f32 v{RL4+k}, {LOG2E:#x}, v{RI4+k}")
    for k in range(4):
        A(f"v_mul_f32 v{RL+k}, {LOG2E:#x}, v{RI+k}")
    for tt in range(2):
        for pr in range(2):
            for ii in range(2):
                i = 2*pr + ii
                ak = ACC(2+tt, i); av = ACC(4+tt, i)
                for h in range(2):
                    p, sel = bc(CK+tt)
                    A(f"v_pk_fma_f32 {v(ak+2*h,2)}, {v(NM4+4*i+2*h,2)}, {p}, {v(ak+2*h,2)} op_sel:[0,{sel},0] op_sel_hi:[1,{sel},1]")
                    p, sel = bc(CK+2+tt)
                    A(f"v_pk_fma_f32 {v(av+2*h,2)}, {v(NM4+4*i+2*h,2)}, {p}, {v(av+2*h,2)} op_sel:[0,{sel},0] op_sel_hi:[1,{sel},1]")
                    phi_pair(A, ak+2*h, (v(RI4+4*i+2*h,2),0,1), (v(RL4+4*i+2*h,2),0,1), K1, KE, TMP+2*h)
                    A(f"v_pk_mul_f32 {v(av+2*h,2)}, {v(av+2*h,2)}, {v(RI4+4*i+2*h,2)}")
                    A(f"v_cvt_pk_bf16_f32 v{PK+4*pr+2*ii+h}, v{ak+2*h}, v{ak+2*h+1}")
                    A(f"v_cvt_pk_bf16_f32 v{VV+4*pr+2*ii+h}, v{av+2*h}, v{av+2*h+1}")
        A("s_nop 1")
        for pr in range(2):
            c = "0" if pr == 0 else v(KVA+4*tt,4)
            A(f"v_mfma_f32_16x16x32_bf16 {v(KVA+4*tt,4)}, {v(PK+4*pr,4)}, {v(VV+4*pr,4)}, {c}")
            c = "0" if pr == 0 else v(ZA+4*tt,4)
            A(f"v_mfma_f32_16x16x32_bf16 {v(ZA+4*tt,4)}, {v(V_ONES,4)}, {v(PK+4*pr,4)}, {c}")
    A("s_nop 7")
    A("s_nop 1")
    A(f"s_mul_i32 s{S_T}, s{S_W}, 2560")
    A(f"s_add_u32 s{S_T}, s{S_T}, {KVX}")
    A(f"v_lshlrev_b32 v{t+2}, 4, v{V_LANE}")
    A(f"v_lshlrev_b32 v{t+3}, 2, v{V_LANE}")
    A(f"v_add_u32 v{t+4}, s{S_T}, v{t+2}")
    A(f"v_add_u32 v{t+5}, s{S_T}, v{t+3}")
    for tt in range(2):
        A(f"ds_write_b128 v{t+4}, {v(KVA+4*tt,4)} offset:{1280*tt}")
        A(f"ds_write_b32 v{t+5}, v{ZA+4*tt} offset:{1280*tt+1024}")
    A("s_waitcnt lgkmcnt(0)")
    A("s_barrier")
    A(f"s_lshl_b32 s{S_T}, s{S_WC}, 1")
    A(f"s_add_u32 s{S_T}, s{S_T}, s{S_WR}")
    A(f"s_mul_i32 s{S_T+1}, s{S_T}, 1280")
    A(f"s_add_u32 s{S_T+1}, s{S_T+1}, {KVX}")
    A(f"v_add_u32 v{t+4}, s{S_T+1}, v{t+2}")
    A(f"v_add_u32 v{t+5}, s{S_T+1}, v{t+3}")
    A(f"ds_read_b128 {v(KVA,4)}, v{t+4}")
    A(f"ds_read_b128 {v(KVA+4,4)}, v{t+4} offset:5120")
    A(f"ds_read_b32 v{ZA}, v{t+5} offset:1024")
    A(f"ds_read_b32 v{ZA+1}, v{t+5} offset:{5120+1024}")
    A(f"s_lshl_b32 s{S_T+2}, s{S_CG}, 2")
    A(f"s_add_u32 s{S_T+2}, s{S_T+2}, s{S_T}")
    A(f"s_lshl_b32 s{S_T+3}, s{S_T+2}, 10")
    A(f"s_add_u32 s{S_T+3}, s{S_T+3}, {WS_KV}")
    A(f"s_lshl_b32 s{S_T+2}, s{S_T+2}, 6")
    A(f"s_add_u32 s{S_T+2}, s{S_T+2}, {WS_Z}")
    A(f"v_cmp_gt_u32 vcc, 16, v{V_LANE}")
    A(f"v_mov_b32 v{t+4}, 0x7ffffff0")
    A("s_nop 0")
    A(f"v_cndmask_b32 v{t+4}, v{t+4}, v{t+3}, vcc")
    A("s_waitcnt lgkmcnt(0)")
    A(f"v_pk_add_f32 {v(KVA,2)}, {v(KVA,2)}, {v(KVA+4,2)}")
    A(f"v_pk_add_f32 {v(KVA+2,2)}, {v(KVA+2,2)}, {v(KVA+6,2)}")
    A(f"v_add_f32 v{ZA}, v{ZA}, v{ZA+1}")
    for r in range(4):
        A(f"buffer_atomic_add_f32 v{KVA+r}, v{t+3}, s[{S_ACT}:{S_ACT+3}], s{S_T+3} offen offset:{256*r}")
    A(f"buffer_atomic_add_f32 v{ZA}, v{t+4}, s[{S_ACT}:{S_ACT+3}], s{S_T+2} offen")
    A(f"s_lshl_b32 s{S_T+8}, s{S_CG}, 1")
    A(f"s_add_u32 s{S_T+8}, s{S_T+8}, s{S_WC}")
    A(f"s_add_u32 s{S_T+8}, s{S_T+8}, 43")
    store_bases(A, S_T+8)
    OUT = [20, 24, 28, 32]
    for i in range(4):
        o = OUT[i]
        for tt in range(2):
            ac = ACC(tt, i)
            for h in range(2):
                pk_fma_bc1(A, ac+2*h, CQ0+4*tt+2*h, NM+i, ac+2*h)
                p, sel = bc(RI+i); p2, sel2 = bc(RL+i)
                phi_pair(A, ac+2*h, (p,sel,sel), (p2,sel2,sel2), K1, KE, TMP+2*h)
                A(f"v_cvt_pk_bf16_f32 v{o+2*tt+h}, v{ac+2*h}, v{ac+2*h+1}")
        A(f"buffer_store_dwordx4 {v(o,4)}, v{t+2}, s[{S_ACT}:{S_ACT+3}], s{S_T+4+i} offen{sc}")

def k_phase1():
    A = Asm()
    A("s_cmp_ge_u32 s2, 256")
    A("s_cbranch_scc1 L1_end")
    load_ptrs(A)
    A(f"""
v_and_b32 v{V_LANE}, 63, v0
v_lshrrev_b32 v{V_T}, 6, v0
s_and_b32 s{S_T}, s2, 7
s_lshr_b32 s{S_T+1}, s2, 3
v_readfirstlane_b32 s{S_W}, v{V_T}
s_and_b32 s{S_RB}, s{S_T}, 1
s_lshl_b32 s{S_RB}, s{S_RB}, 3
s_and_b32 s{S_T+2}, s{S_T+1}, 7
s_add_u32 s{S_RB}, s{S_RB}, s{S_T+2}
s_lshr_b32 s{S_CG}, s{S_T}, 1
s_lshl_b32 s{S_CG}, s{S_CG}, 2
s_lshr_b32 s{S_T+2}, s{S_T+1}, 3
s_add_u32 s{S_CG}, s{S_CG}, s{S_T+2}
s_lshr_b32 s{S_WR}, s{S_W}, 1
s_and_b32 s{S_WC}, s{S_W}, 1
""")
    A(f"""
v_lshrrev_b32 v{V_T}, 2, v{V_LANE}
v_and_b32 v{V_T}, 7, v{V_T}
s_lshl_b32 s{S_T}, s{S_W}, 3
v_add_u32 v{V_T}, s{S_T}, v{V_T}
v_and_b32 v{V_T+1}, 3, v{V_LANE}
s_lshl_b32 s{S_T}, s{S_WC}, 1
v_xor_b32 v{V_T+1}, s{S_T}, v{V_T+1}
v_lshlrev_b32 v{V_T+1}, 4, v{V_T+1}
v_lshrrev_b32 v{V_T+2}, 5, v{V_LANE}
v_lshlrev_b32 v{V_T+2}, 6, v{V_T+2}
v_add_u32 v{V_T+1}, v{V_T+1}, v{V_T+2}
v_lshlrev_b32 v{V_OX}, 10, v{V_T}
v_add_u32 v{V_OX}, v{V_OX}, v{V_T+1}
s_cmp_lt_u32 s{S_CG}, 8
s_movk_i32 s{S_STR}, 2752
s_cselect_b32 s{S_STR}, 3072, s{S_STR}
v_mul_lo_u32 v{V_OW}, v{V_T}, s{S_STR}
v_add_u32 v{V_OW}, v{V_OW}, v{V_T+1}
s_lshl_b32 s{S_STR64}, s{S_STR}, 6
s_lshl_b32 s{S_XO}, s{S_RB}, 17
s_mov_b32 s{S_WO}, 0
s_lshl_b32 s{S_M0}, s{S_W}, 10
""")
    A(f"""
s_lshl_b32 s{S_T}, s{S_CG}, 7
s_sub_u32 s{S_T+1}, s{S_CG}, 8
s_mul_i32 s{S_T+1}, s{S_T+1}, 384
s_cmp_lt_u32 s{S_CG}, 8
s_cselect_b32 s{S_WC0}, s{S_T}, s{S_T+1}
s_movk_i32 s{S_T}, 128
s_cselect_b32 s{S_T}, 1024, s{S_T}
s_add_u32 s{S_WC0+1}, s{S_WC0}, s{S_T}
s_add_u32 s{S_WC0+2}, s{S_WC0+1}, s{S_T}
s_lshl_b32 s{S_T}, s{S_STR}, 5
s_add_u32 s{S_WC0+3}, s{S_WC0}, s{S_T}
s_add_u32 s{S_WC0+4}, s{S_WC0+1}, s{S_T}
s_add_u32 s{S_WC0+5}, s{S_WC0+2}, s{S_T}
s_waitcnt lgkmcnt(0)
""")
    srd(A, S_X, 4, 0x200000)
    A(f"s_cmp_lt_u32 s{S_CG}, 8")
    A(f"s_cselect_b32 s{S_WS_}, s6, s12")
    A(f"s_cselect_b32 s{S_WS_+1}, s7, s13")
    A(f"s_mov_b32 s{S_WS_+2}, 1409024")
    A(f"s_cselect_b32 s{S_WS_+2}, 0x180000, s{S_WS_+2}")
    A(f"s_mov_b32 s{S_WS_+3}, 0x20000")
    srd(A, S_ACT, 20, WS_USED)
    for st in range(3):
        for l in p1_dma(st): A(l)
    b = V_T
    A(f"""
v_lshrrev_b32 v{b}, 3, v{V_LANE}
v_and_b32 v{b}, 1, v{b}
v_lshrrev_b32 v{b+1}, 4, v{V_LANE}
v_lshlrev_b32 v{b+2}, 1, v{b}
v_xor_b32 v{b+2}, v{b+2}, v{b+1}
v_lshlrev_b32 v{b+2}, 4, v{b+2}
v_lshlrev_b32 v{b+3}, 10, v{b}
v_add_u32 v{b+2}, v{b+2}, v{b+3}
v_and_b32 v{b+3}, 7, v{V_LANE}
v_lshlrev_b32 v{b+3}, 6, v{b+3}
v_add_u32 v{b+2}, v{b+2}, v{b+3}
s_lshl_b32 s{S_T}, s{S_WR}, 13
s_lshl_b32 s{S_T+1}, s{S_WC}, 12
s_add_u32 s{S_T+2}, s{S_T}, s{S_T+1}
s_sub_u32 s{S_T+3}, s{S_T}, s{S_T+1}
s_add_u32 s{S_T+3}, s{S_T+3}, 4096
v_add_u32 v{V_AXL}, s{S_T+2}, v{b+2}
v_add_u32 v{V_AXH}, s{S_T+3}, v{b+2}
""")
    A(f"""
v_lshlrev_b32 v{b+2}, 10, v{b+1}
v_lshrrev_b32 v{b+3}, 2, v{V_LANE}
v_and_b32 v{b+3}, 3, v{b+3}
v_lshlrev_b32 v{b+3}, 6, v{b+3}
v_add_u32 v{b+2}, v{b+2}, v{b+3}
v_and_b32 v{b+3}, 3, v{V_LANE}
v_lshlrev_b32 v{b+3}, 3, v{b+3}
v_add_u32 v{b+2}, v{b+2}, v{b+3}
s_lshl_b32 s{S_T}, s{S_WC}, 9
s_add_u32 s{S_T}, s{S_T}, {WR}
v_add_u32 v{b+2}, s{S_T}, v{b+2}
v_and_b32 v{b+3}, 1, v{b+1}
v_lshlrev_b32 v{b+3}, 5, v{b+3}
v_add_u32 v{V_AW}, v{b+2}, v{b+3}
v_xor_b32 v{b+3}, 32, v{b+3}
v_add_u32 v{V_AW+1}, v{b+2}, v{b+3}
v_add_u32 v{V_AW+2}, 49152, v{V_AW}
v_add_u32 v{V_AW+3}, 49152, v{V_AW+1}
v_mov_b32 v{V_ONES}, 0x3f803f80
v_mov_b32 v{V_ONES+1}, 0x3f803f80
v_mov_b32 v{V_ONES+2}, 0x3f803f80
v_mov_b32 v{V_ONES+3}, 0x3f803f80
s_waitcnt vmcnt(20)
s_barrier
""")
    for l in p1_reads(0, 0, 0): A(l)
    A("s_waitcnt lgkmcnt(0)")
    A(f"s_cmp_ge_u32 s{S_CG}, 8")
    A("s_cbranch_scc1 L1_ffn")
    p1_mainloop(A, True)
    p1_stats(A)
    p1_epi_qkv(A)
    A("s_branch L1_end")
    A.label("L1_ffn")
    p1_mainloop(A, False)
    p1_stats(A)
    p1_epi_ffn(A)
    A.label("L1_end")
    A("s_endpgm")
    return A.text()

S2_RB = 22; S2_CT = 23
S_W2 = 28; S_WOS = 32; S_OUT = 40; S_XR = 44
P2_ACC = 16
P2_AF = 80
def A2(nt, st): return P2_ACC + (nt*4+st)*4
def AF(b, st): return P2_AF + b*16 + st*4
V2_OW = 2; V2_L16 = 3; V2_AW = 4
V2_XRES = 8
RED_STRIDE = 272

def k_phase2():
    A = Asm()
    A("s_cmp_ge_u32 s2, 256")
    A("s_cbranch_scc1 L2_end")
    load_ptrs(A)
    T = 56
    A(f"""
v_and_b32 v{V_LANE}, 63, v0
v_lshrrev_b32 v6, 6, v0
s_and_b32 s{T}, s2, 7
s_lshr_b32 s{T+1}, s2, 3
v_readfirstlane_b32 s{S_W}, v6
s_lshl_b32 s{S2_RB}, s{T}, 2
s_and_b32 s{T+2}, s{T+1}, 3
s_add_u32 s{S2_RB}, s{S2_RB}, s{T+2}
s_lshr_b32 s{S2_CT}, s{T+1}, 2
""")
    A(f"""
v_lshrrev_b32 v6, 2, v{V_LANE}
v_and_b32 v6, 7, v6
v_lshrrev_b32 v7, 2, v6
v_lshlrev_b32 v7, 1, v7
v_and_b32 v8, 3, v{V_LANE}
v_xor_b32 v7, v7, v8
v_lshlrev_b32 v7, 4, v7
v_lshlrev_b32 v6, 10, v6
v_add_u32 v6, v6, v7
v_lshrrev_b32 v7, 5, v{V_LANE}
v_lshlrev_b32 v7, 6, v7
v_add_u32 v6, v6, v7
s_lshl_b32 s{T}, s{S2_CT}, 7
v_add_u32 v{V2_OW}, s{T}, v6
v_lshlrev_b32 v{V2_L16}, 4, v{V_LANE}
""")
    A(f"""
v_lshrrev_b32 v6, 5, v{V_LANE}
v_lshlrev_b32 v6, 10, v6
v_lshrrev_b32 v7, 4, v{V_LANE}
v_and_b32 v7, 1, v7
v_lshlrev_b32 v8, 8, v7
v_add_u32 v6, v6, v8
v_lshrrev_b32 v8, 2, v{V_LANE}
v_and_b32 v8, 3, v8
v_lshlrev_b32 v8, 6, v8
v_add_u32 v6, v6, v8
v_and_b32 v8, 3, v{V_LANE}
v_lshlrev_b32 v8, 3, v8
v_add_u32 v6, v6, v8
s_mul_i32 s{S_M0}, s{S_W}, 40960
v_add_u32 v6, s{S_M0}, v6
v_lshlrev_b32 v7, 5, v7
v_add_u32 v{V2_AW}, v6, v7
v_xor_b32 v7, 32, v7
v_add_u32 v{V2_AW+1}, v6, v7
s_waitcnt lgkmcnt(0)
""")
    srd(A, S_W2, 14, 1376*1024)
    srd(A, S_WOS, 8, 512*1024)
    srd(A, S_ACT, 20, WS_USED)
    srd(A, S_OUT, 16, 0x200000)
    srd(A, S_XR, 4, 0x200000)
    A(f"s_mul_i32 s48, s{S_W}, {11*32768}")
    A(f"s_lshl_b32 s49, s{S_W}, 17")
    A(f"s_lshl_b32 s{T}, s{S2_RB}, 2")
    A(f"s_mul_i32 s{T}, s{T}, {NKB*1024}")
    A(f"s_mul_i32 s{T+1}, s{S_W}, {11*1024}")
    A(f"s_add_u32 s64, s{T}, s{T+1}")
    A(f"s_lshl_b32 s{T+1}, s{S_W}, 12")
    A(f"s_add_u32 s65, s{T}, s{T+1}")
    A(f"s_add_u32 s65, s65, {43*1024}")
    def w2dma(b, slot):
        for q in range(4):
            A(f"s_add_u32 m0, s{S_M0}, {slot*4096 + q*1024}")
            if b < 11:
                A(f"s_add_u32 s{T}, s48, {b*32768 + q*8192}")
                A(f"buffer_load_dwordx4 v{V2_OW}, s[{S_W2}:{S_W2+3}], s{T} offen lds")
            else:
                A(f"s_add_u32 s{T}, s49, {(b-11)*32768 + q*8192}")
                A(f"buffer_load_dwordx4 v{V2_OW}, s[{S_WOS}:{S_WOS+3}], s{T} offen lds")
    def w2read(b, slot):
        for nt in range(4):
            for hh in range(2):
                A(f"ds_read_b64_tr_b16 {a(16*b+4*nt+2*hh,2)}, v{V2_AW+(nt&1)} offset:{slot*4096 + hh*2048 + (nt>>1)*512}")
    for b in range(10): w2dma(b, b)
    A("s_waitcnt vmcnt(0)")
    for b in range(10):
        w2read(b, b)
        A("s_waitcnt lgkmcnt(8)" if b < 9 else "s_waitcnt lgkmcnt(0)")
    for b in range(10, 15): w2dma(b, b - 10)
    A(f"""
v_lshrrev_b32 v6, 3, v0
v_lshlrev_b32 v6, 10, v6
v_and_b32 v7, 7, v0
v_lshlrev_b32 v7, 4, v7
v_add_u32 v6, v6, v7
s_lshl_b32 s66, s{S2_RB}, 16
s_lshl_b32 s{T}, s{S2_CT}, 7
s_add_u32 s66, s66, s{T}
s_add_u32 s67, s66, 32768
buffer_load_dwordx4 v[{V2_XRES}:{V2_XRES+3}], v6, s[{S_XR}:{S_XR+3}], s66 offen
buffer_load_dwordx4 v[{V2_XRES+4}:{V2_XRES+7}], v6, s[{S_XR}:{S_XR+3}], s67 offen
""")
    for b in range(11):
        for st in range(4):
            A(f"s_add_u32 s{T}, s64, {st*NKB*1024 + b*1024}")
            A(f"buffer_load_dwordx4 {v(AF(b,st),4)}, v{V2_L16}, s[{S_ACT}:{S_ACT+3}], s{T} offen")
    A("s_waitcnt vmcnt(46)")
    for b in range(10, 15):
        w2read(b, b - 10)
    A("s_waitcnt lgkmcnt(0)")
    for b in range(11):
        A(f"s_waitcnt vmcnt({4*(10-b)})")
        for nt in range(4):
            for st in range(4):
                c = "0" if b == 0 else v(A2(nt,st),4)
                A(f"v_mfma_f32_16x16x32_bf16 {v(A2(nt,st),4)}, {a(16*b+4*nt,4)}, {v(AF(b,st),4)}, {c}")
    A("s_nop 7")
    for b in range(4):
        for st in range(4):
            A(f"s_add_u32 s{T}, s65, {st*NKB*1024 + b*1024}")
            A(f"buffer_load_dwordx4 {v(AF(b,st),4)}, v{V2_L16}, s[{S_ACT}:{S_ACT+3}], s{T} offen")
    KVR = AF(4,0); ZR = AF(6,0); KVF = AF(8,0); ZF = AF(9,0); NUM = AF(10,0)
    A(f"v_lshlrev_b32 v6, 2, v{V_LANE}")
    A(f"s_lshl_b32 s{T+1}, s{S_W}, 13")
    A(f"s_add_u32 s{T+1}, s{T+1}, {WS_KV}")
    for h in range(8):
        A(f"s_add_u32 s{T}, s{T+1}, {h*1024}")
        for r in range(4):
            A(f"buffer_load_dword v{KVR+4*h+r}, v6, s[{S_ACT}:{S_ACT+3}], s{T} offen offset:{256*r}")
    A(f"v_lshrrev_b32 v7, 4, v{V_LANE}")
    A(f"v_lshlrev_b32 v7, 4, v7")
    A(f"s_lshl_b32 s{T+1}, s{S_W}, 9")
    A(f"s_add_u32 s{T+1}, s{T+1}, {WS_Z}")
    for h in range(8):
        A(f"buffer_load_dwordx4 {v(ZR+4*h,4)}, v7, s[{S_ACT}:{S_ACT+3}], s{T+1} offen offset:{64*h}")
    A("s_waitcnt vmcnt(0)")
    for h in range(8):
        A(f"v_cvt_pk_bf16_f32 v{KVF+2*h}, v{KVR+4*h}, v{KVR+4*h+1}")
        A(f"v_cvt_pk_bf16_f32 v{KVF+2*h+1}, v{KVR+4*h+2}, v{KVR+4*h+3}")
        A(f"v_cvt_pk_bf16_f32 v{ZF+2*h}, v{ZR+4*h}, v{ZR+4*h+1}")
        A(f"v_cvt_pk_bf16_f32 v{ZF+2*h+1}, v{ZR+4*h+2}, v{ZR+4*h+3}")
    A("s_nop 1")
    for b in range(4):
        for st in range(4):
            pq = AF(b, st)
            for tt in range(2):
                h = 2*b + tt
                A(f"v_mfma_f32_16x16x16_bf16 {v(NUM+8*tt,4)}, {v(KVF+2*h,2)}, {v(pq+2*tt,2)}, 0")
                A(f"v_mfma_f32_16x16x16_bf16 {v(NUM+8*tt+4,4)}, {v(ZF+2*h,2)}, {v(pq+2*tt,2)}, 0")
            A("s_nop 7")
            for tt in range(2):
                A(f"v_add_f32 v{NUM+8*tt+4}, 0x358637bd, v{NUM+8*tt+4}")
                A(f"v_rcp_f32 v{NUM+8*tt+4}, v{NUM+8*tt+4}")
            A("s_nop 0")
            for tt in range(2):
                for hh in range(2):
                    pk_mul_bc1(A, NUM+8*tt+2*hh, NUM+8*tt+2*hh, NUM+8*tt+4)
                    A(f"v_cvt_pk_bf16_f32 v{pq+2*tt+hh}, v{NUM+8*tt+2*hh}, v{NUM+8*tt+2*hh+1}")
            A("s_nop 1")
            for nt in range(4):
                A(f"v_mfma_f32_16x16x32_bf16 {v(A2(nt,st),4)}, {a(16*(11+b)+4*nt,4)}, {v(pq,4)}, {v(A2(nt,st),4)}")
    A("s_nop 7")
    A("s_barrier")
    A(f"""
v_and_b32 v6, 15, v{V_LANE}
v_mul_u32_u24 v6, {RED_STRIDE}, v6
v_lshrrev_b32 v7, 4, v{V_LANE}
v_lshlrev_b32 v7, 4, v7
v_add_u32 v6, v6, v7
s_mul_i32 s{T}, s{S_W}, {64*RED_STRIDE}
v_add_u32 v6, s{T}, v6
""")
    for st in range(4):
        for nt in range(4):
            A(f"ds_write_b128 v6, {v(A2(nt,st),4)} offset:{st*16*RED_STRIDE + nt*64}")
    A("s_waitcnt lgkmcnt(0)")
    A("s_barrier")
    A(f"""
v_lshrrev_b32 v6, 3, v0
v_mul_u32_u24 v6, {RED_STRIDE}, v6
v_and_b32 v7, 7, v0
v_lshlrev_b32 v7, 5, v7
v_add_u32 v6, v6, v7
""")
    R = 80
    for it in range(2):
        for w in range(4):
            for hf in range(2):
                A(f"ds_read_b128 {v(R + (it*8 + w*2 + hf)*4, 4)}, v6 offset:{w*64*RED_STRIDE + it*32*RED_STRIDE + hf*16}")
    A(f"""
v_lshrrev_b32 v6, 3, v0
v_lshlrev_b32 v6, 10, v6
v_and_b32 v7, 7, v0
v_lshlrev_b32 v7, 4, v7
v_add_u32 v6, v6, v7
s_waitcnt lgkmcnt(0)
""")
    for it in range(2):
        b0 = R + it*32
        for w in range(1, 4):
            for k in range(4):
                A(f"v_pk_add_f32 {v(b0+2*k,2)}, {v(b0+2*k,2)}, {v(b0+8*w+2*k,2)}")
        for k in range(4):
            x = V2_XRES + 4*it + k
            A(f"v_lshlrev_b32 v{b0+8}, 16, v{x}")
            A(f"v_and_b32 v{b0+9}, 0xffff0000, v{x}")
            A(f"v_pk_add_f32 {v(b0+2*k,2)}, {v(b0+2*k,2)}, {v(b0+8,2)}")
            A(f"v_cvt_pk_bf16_f32 v{b0+12+k}, v{b0+2*k}, v{b0+2*k+1}")
        A(f"buffer_store_dwordx4 {v(b0+12,4)}, v6, s[{S_OUT}:{S_OUT+3}], s{66+it} offen")
    A.label("L2_end")
    A("s_endpgm")
    return A.text()

def main(out):
    hdr = open("parallel_sum__linear_attn_block__dense_activation_relu__prompt.s.ref").read().split("; Override")[0]
    s_ = hdr
    s_ += "; @launch kernel=zero_kernel grid=(9,1,1) block=(256,1,1) lds=0\n"
    s_ += "; @launch kernel=p1_kernel grid=(256,1,1) block=(256,1,1) lds=163840\n"
    s_ += "; @launch kernel=p2_kernel grid=(256,1,1) block=(256,1,1) lds=163840\n"
    s_ += '.amdgcn_target "amdgcn-amd-amdhsa--gfx950"\n.text\n'
    s_ += head("zero_kernel") + k_zero() + kd("zero_kernel", 8, 48, 8)
    s_ += head("p1_kernel") + k_phase1() + kd("p1_kernel", 256, 80, 256)
    s_ += head("p2_kernel") + k_phase2() + kd("p2_kernel", 512, 80, 256)
    open(out, "w").write(s_)

if __name__ == "__main__":
    main(sys.argv[1] if len(sys.argv) > 1 else "v1.s")
```
